```python
import torch

def _softmax(x, axis=-1):
    return torch.softmax(x, dim=axis)
def _gelu(x):
    return torch.nn.functional.gelu(x, approximate="tanh")
def _silu(x):
    return torch.nn.functional.silu(x)
def _sigmoid(x):
    return torch.sigmoid(x)
def _layernorm(x, axis=-1, eps=1e-5):
    m = x.mean(dim=axis, keepdim=True)
    v = x.var(dim=axis, keepdim=True, unbiased=False)
    return (x - m) / torch.sqrt(v + eps)
def _scatter_add(tgt, idx, src, axis=0):
    return tgt.clone().index_add_(axis, idx, src)
def _segment_sum(src, seg, n):
    out = torch.zeros((n,) + src.shape[1:], dtype=src.dtype)
    return out.index_add_(0, seg, src)
def _pad(x, pw):
    flat = tuple(v for pair in reversed(pw) for v in pair)
    return torch.nn.functional.pad(x, flat)

kernel_name = 'standalone__fused_io_aware_attn__prompt'

def setup_inputs():

    _w = (lambda a: (lambda t: t.to(torch.bfloat16) if t.is_floating_point() else t)(torch.as_tensor(a)))
    B, H, S = 1, 32, 2048
    Dh = max(1, 512 // 32)
    return {
        "q": _w((lambda *s: torch.randn(*s, dtype=torch.bfloat16) * 0.8)(B, H, S, Dh)),
        "k": _w((lambda *s: torch.randn(*s, dtype=torch.bfloat16) * 0.8)(B, H, S, Dh)),
        "v": _w((lambda *s: torch.randn(*s, dtype=torch.bfloat16) * 0.05)(B, H, S, Dh)),
    }

def reference(q, k, v):
    scale = q.shape[-1] ** -0.5
    s = torch.einsum('bhqd,bhkd->bhqk', q, k) * scale
    p = _softmax(s, axis=-1)
    return torch.einsum('bhqk,bhkd->bhqd', p, v)
```

```python
import sys, struct

NAME = "standalone__fused_io_aware_attn__prompt"
NT = 64
VB = 65536 + 16
VSTR = 1040
LDS_BYTES = VB + NT * VSTR
C_SCALE = 0.25 * 1.4426950408889634

def f32bits(x):
    return struct.unpack("<I", struct.pack("<f", x))[0]

S = [16, 32]
O = 48
NM = 64
Q = 80
KF = 84
VF = [88, 96]
PK = [104, 108]
K0 = 112
T = 116
vLANEOFF = 2
vKADDR = 3
vVA = [4, 5, 6, 7]
vLANE = 8
NVGPR = 128

sQ, sK, sV, sO = 8, 12, 16, 20
sWAVE, sHEADOFF, sQOFF, sG, sKL, sVL, sC, sFLAG, sCNT = 24, 25, 26, 27, 28, 29, 30, 31, 32

def r(b, n):
    return f"v[{b}:{b+n-1}]"

def gen(barriers, prios, out):
    L = []
    A = L.append
    A(f"""; Fused attention forward, B=1 H=32 S=2048 D=16, bf16.  Generated by gen/gen1.py
; @launch grid=(256,1,1) block=(512,1,1) lds={LDS_BYTES}
.amdgcn_target "amdgcn-amd-amdhsa--gfx950"
.text
.globl {NAME}_kernel
.p2align 8
.type {NAME}_kernel,@function
{NAME}_kernel:
    s_cmp_ge_u32 s2, 256
    s_cbranch_scc1 L_end
    s_load_dwordx4 s[36:39], s[0:1], 0        ; q, k
    s_load_dwordx4 s[40:43], s[0:1], 16       ; v, out
    v_lshrrev_b32 v1, 6, v0
    v_and_b32 v{vLANE}, 63, v0                ; lane
    v_readfirstlane_b32 s{sWAVE}, v1
    v_and_b32 v9, 31, v0
    v_lshlrev_b32 v9, 5, v9                   ; (l&31)*32
    v_bfe_u32 v10, v0, 5, 1                   ; h = (l>>5)&1
    v_lshl_add_u32 v{vLANEOFF}, v10, 4, v9    ; + h*16
    v_lshlrev_b32 v{vKADDR}, 4, v{vLANE}      ; lane*16
    s_and_b32 s33, s2, 7
    s_lshl_b32 s33, s33, 2
    s_lshr_b32 s34, s2, 6
    s_add_u32 s33, s33, s34
    s_lshl_b32 s{sHEADOFF}, s33, 16
    s_lshr_b32 s34, s2, 3
    s_and_b32 s34, s34, 7
    s_lshl_b32 s34, s34, 13
    s_lshl_b32 s35, s{sWAVE}, 10              ; wave * 1024
    s_add_u32 s{sQOFF}, s{sHEADOFF}, s34
    s_add_u32 s{sQOFF}, s{sQOFF}, s35
    s_add_u32 s{sG}, s{sHEADOFF}, s35
    s_mov_b32 s{sKL}, s35
    s_mul_i32 s{sVL}, s{sWAVE}, {VSTR}
    s_add_u32 s{sVL}, s{sVL}, {VB}
    s_mov_b32 s{sC}, 0x{f32bits(C_SCALE):08x}
    s_mov_b32 s{sFLAG}, 0
    s_mov_b32 s{sQ+2}, 2097152
    s_mov_b32 s{sQ+3}, 0x00020000
    s_mov_b32 s{sK+2}, 2097152
    s_mov_b32 s{sK+3}, 0x00020000
    s_mov_b32 s{sV+2}, 2097152
    s_mov_b32 s{sV+3}, 0x00020000
    s_mov_b32 s{sO+2}, 2097152
    s_mov_b32 s{sO+3}, 0x00020000
    s_waitcnt lgkmcnt(0)
    s_mov_b32 s{sQ}, s36
    s_mov_b32 s{sQ+1}, s37
    s_mov_b32 s{sK}, s38
    s_mov_b32 s{sK+1}, s39
    s_mov_b32 s{sV}, s40
    s_mov_b32 s{sV+1}, s41
    s_mov_b32 s{sO}, s42
    s_mov_b32 s{sO+1}, s43
    buffer_load_dwordx4 {r(T,4)}, v{vLANEOFF}, s[{sQ}:{sQ+3}], s{sQOFF} offen
    buffer_load_dwordx4 {r(K0,4)}, v{vLANEOFF}, s[{sK}:{sK+3}], s{sHEADOFF} offen""")
    for i in range(8):
        A(f"    s_mov_b32 m0, s{sKL}")
        A(f"    s_add_u32 s{sKL}, s{sKL}, 8192")
        A(f"    buffer_load_dwordx4 v{vLANEOFF}, s[{sK}:{sK+3}], s{sG} offen lds")
        A(f"    s_mov_b32 m0, s{sVL}")
        A(f"    s_add_u32 s{sVL}, s{sVL}, {8*VSTR}")
        A(f"    buffer_load_dwordx4 v{vKADDR}, s[{sV}:{sV+3}], s{sG} offen lds")
        if i < 7:
            A(f"    s_add_u32 s{sG}, s{sG}, 8192")
    A(f"""    ; pads of ones between the V tiles: pad index = lane + (wave&1)
    v_and_b32 v9, 1, v1
    v_add_u32 v9, v9, v{vLANE}
    v_mul_u32_u24 v9, {VSTR}, v9
    v_add_u32 v9, {VB-16}, v9
    v_mov_b32 v10, 0x3f803f80
    v_mov_b32 v11, 0x3f803f80
    ds_write_b64 v9, v[10:11]
    v_and_b32 v9, 15, v0
    v_lshlrev_b32 v9, 3, v9
    v_bfe_u32 v10, v0, 5, 1
    v_lshl_add_u32 v9, v10, 7, v9
    v_add_u32 v9, {VB}, v9
    v_mul_u32_u24 v10, {VSTR}, v10
    v_add_u32 v10, {VB-16}, v10
    v_and_b32 v11, 16, v0
    v_cmp_eq_u32 vcc, 0, v11
    v_add_u32 v12, 256, v9
    v_add_u32 v13, 512, v9
    v_add_u32 v14, 768, v9
    v_cndmask_b32 v{vVA[0]}, v10, v9, vcc
    v_cndmask_b32 v{vVA[1]}, v10, v12, vcc
    v_cndmask_b32 v{vVA[2]}, v10, v13, vcc
    v_cndmask_b32 v{vVA[3]}, v10, v14, vcc""")
    for i in range(16):
        A(f"    v_mov_b32 v{O+i}, 0")
    A("    s_waitcnt vmcnt(17)")
    for j in range(4):
        A(f"    v_lshlrev_b32 v{T+4}, 16, v{T+j}")
        A(f"    v_and_b32 v{T+5}, 0xffff0000, v{T+j}")
        A(f"    v_mul_f32 v{T+4}, s{sC}, v{T+4}")
        A(f"    v_mul_f32 v{T+5}, s{sC}, v{T+5}")
        A(f"    v_cvt_pk_bf16_f32 v{Q+j}, v{T+4}, v{T+5}")
    A("    s_waitcnt vmcnt(16)")
    A("    s_nop 1")
    A(f"    v_mfma_f32_32x32x16_bf16 {r(S[1],16)}, {r(K0,4)}, {r(Q,4)}, 0")
    A("    s_nop 15")
    s = S[1]
    A(f"    v_max3_f32 v{T}, v{s}, v{s+1}, v{s+2}")
    A(f"    v_max3_f32 v{T+1}, v{s+3}, v{s+4}, v{s+5}")
    A(f"    v_max3_f32 v{T+2}, v{s+6}, v{s+7}, v{s+8}")
    A(f"    v_max3_f32 v{T+3}, v{s+9}, v{s+10}, v{s+11}")
    A(f"    v_max3_f32 v{T+4}, v{s+12}, v{s+13}, v{s+14}")
    A(f"    v_max3_f32 v{T}, v{T}, v{T+1}, v{s+15}")
    A(f"    v_max3_f32 v{T+2}, v{T+2}, v{T+3}, v{T+4}")
    A(f"    v_max_f32 v{T}, v{T}, v{T+2}")
    A(f"    v_mov_b32 v{T+1}, v{T}")
    A("    s_nop 1")
    A(f"    v_permlane32_swap_b32 v{T}, v{T+1}")
    A("    s_nop 1")
    A(f"    v_max_f32 v{T}, v{T}, v{T+1}")
    for i in range(16):
        A(f"    v_sub_f32 v{NM+i}, 0, v{T}")
    A("    s_nop 1")
    A(f"    v_mfma_f32_32x32x16_bf16 {r(S[0],16)}, {r(K0,4)}, {r(Q,4)}, {r(NM,16)}")
    A("    s_waitcnt vmcnt(14) lgkmcnt(0)")
    A("    s_barrier")
    def rdK(t):
        A(f"    ds_read_b128 {r(KF,4)}, v{vKADDR} offset:{t*1024}")
    def rdV(t):
        b = VF[t & 1]
        for j in range(4):
            A(f"    ds_read_b64_tr_b16 {r(b+2*j,2)}, v{vVA[j]} offset:{t*VSTR}")
    rdK(1); rdV(0)
    for t in range(NT):
        sc, sn = S[t & 1], S[(t + 1) & 1]
        A(f"    ; ---- tile {t} ----")
        if t in barriers:
            A(f"    s_waitcnt vmcnt({barriers[t]})")
            A("    s_barrier")
        if t in prios:
            A(f"    s_setprio {prios[t]}")
        A("    s_waitcnt lgkmcnt(0)")
        if t + 1 < NT:
            A(f"    v_mfma_f32_32x32x16_bf16 {r(sn,16)}, {r(KF,4)}, {r(Q,4)}, {r(NM,16)}")
        if t + 2 < NT:
            rdK(t + 2)
        if t + 1 < NT:
            b = VF[(t + 1) & 1]
            for j in range(2):
                A(f"    ds_read_b64_tr_b16 {r(b+2*j,2)}, v{vVA[j]} offset:{(t+1)*VSTR}")
        E = lambda i: A(f"    v_exp_f32 v{sc+i}, v{sc+i}")
        Cv = lambda j: A(f"    v_cvt_pk_bf16_f32 v{PK[j>>2]+(j&3)}, v{sc+2*j}, v{sc+2*j+1}")
        for i in range(0, 4): E(i)
        if t > 0:
            A(f"    v_mfma_f32_32x32x16_bf16 {r(O,16)}, {r(VF[(t-1)&1]+4,4)}, {r(PK[1],4)}, {r(O,16)}")
        if t + 1 < NT:
            b = VF[(t + 1) & 1]
            for j in range(2, 4):
                A(f"    ds_read_b64_tr_b16 {r(b+2*j,2)}, v{vVA[j]} offset:{(t+1)*VSTR}")
        for i in range(4, 8): E(i)
        for j in range(0, 4): Cv(j)
        for i in range(8, 10): E(i)
        A(f"    v_mfma_f32_32x32x16_bf16 {r(O,16)}, {r(VF[t&1],4)}, {r(PK[0],4)}, {r(O,16)}")
        for i in range(10, 16): E(i)
        for j in range(4, 8): Cv(j)
    A("    s_nop 1")
    A(f"    v_mfma_f32_32x32x16_bf16 {r(O,16)}, {r(VF[(NT-1)&1]+4,4)}, {r(PK[1],4)}, {r(O,16)}")
    A("L_finish:")
    A("    s_nop 15")
    A(f"    v_max3_f32 v{T}, |v{O}|, |v{O+1}|, |v{O+2}|")
    A(f"    v_max3_f32 v{T+1}, |v{O+3}|, |v{O+4}|, |v{O+5}|")
    A(f"    v_max3_f32 v{T+2}, |v{O+6}|, |v{O+7}|, v{T}")
    A(f"    v_rcp_f32 v{T+4}, v{O+8}")
    A(f"    v_add_f32 v{T+3}, v{O}, v{O+1}")
    A(f"    v_add_f32 v{T+5}, v{O+2}, v{O+3}")
    A(f"    v_add_f32 v{T+6}, v{O+4}, v{O+5}")
    A(f"    v_add_f32 v{T+7}, v{O+6}, v{O+7}")
    A(f"    v_max_f32 v{T+2}, v{T+2}, v{T+1}")
    A(f"    v_add_f32 v{T+3}, v{T+3}, v{T+5}")
    A(f"    v_add_f32 v{T+6}, v{T+6}, v{T+7}")
    A(f"    v_add_f32 v{T+3}, v{T+3}, v{T+6}")
    A(f"    s_mov_b32 s33, 0x{f32bits(2.0**60):08x}")
    A(f"    s_mov_b32 s34, 0x{f32bits(2.0**-60):08x}")
    A(f"    s_mov_b32 s35, 0x{f32bits(2.0**120):08x}")
    A(f"    v_cmp_nle_f32 s[36:37], v{O+8}, s33          ; !(l <= 2^60)")
    A(f"    v_cmp_nge_f32 s[38:39], v{O+8}, s34          ; !(l >= 2^-60)")
    A(f"    v_cmp_nle_f32 s[40:41], v{T+2}, s35          ; !(max|O| <= 2^120)")
    A(f"    v_cmp_u_f32 s[42:43], v{T+3}, v{T+3}")
    A("    s_or_b64 s[36:37], s[36:37], s[38:39]")
    A("    s_or_b64 s[40:41], s[40:41], s[42:43]")
    A("    s_or_b64 s[36:37], s[36:37], s[40:41]")
    A("    s_cbranch_scc0 L_store")
    A(f"    s_cmp_eq_u32 s{sFLAG}, 0")
    A("    s_cbranch_scc1 L_fallback")
    A("L_store:")
    for i in range(8):
        A(f"    v_mul_f32 v{O+i}, v{O+i}, v{T+4}")
    for j in range(4):
        A(f"    v_cvt_pk_bf16_f32 v{PK[0]+j}, v{O+2*j}, v{O+2*j+1}")
    A("    s_nop 1")
    A(f"    v_permlane32_swap_b32 v{PK[0]}, v{PK[0]+2}")
    A(f"    v_permlane32_swap_b32 v{PK[0]+1}, v{PK[0]+3}")
    A(f"    buffer_store_dwordx4 {r(PK[0],4)}, v{vLANEOFF}, s[{sO}:{sO+3}], s{sQOFF} offen")
    A("L_end:")
    A("    s_endpgm")
    s = S[0]
    A("L_fallback:")
    A(f"    s_mov_b32 s{sFLAG}, 1")
    A(f"    v_mov_b32 v{T}, 0xff800000                  ; -inf")
    A(f"    v_mov_b32 v{T+1}, v{vKADDR}")
    A(f"    s_mov_b32 s{sCNT}, {NT}")
    A("L_fb_max:")
    A(f"    ds_read_b128 {r(KF,4)}, v{T+1}")
    A(f"    v_add_u32 v{T+1}, 1024, v{T+1}")
    A("    s_waitcnt lgkmcnt(0)")
    A(f"    v_mfma_f32_32x32x16_bf16 {r(s,16)}, {r(KF,4)}, {r(Q,4)}, 0")
    A("    s_nop 15")
    for i in range(0, 16, 2):
        A(f"    v_max3_f32 v{T}, v{T}, v{s+i}, v{s+i+1}")
    A(f"    s_sub_u32 s{sCNT}, s{sCNT}, 1")
    A(f"    s_cmp_lg_u32 s{sCNT}, 0")
    A("    s_cbranch_scc1 L_fb_max")
    A(f"    v_mov_b32 v{T+1}, v{T}")
    A("    s_nop 1")
    A(f"    v_permlane32_swap_b32 v{T}, v{T+1}")
    A("    s_nop 1")
    A(f"    v_max_f32 v{T}, v{T}, v{T+1}")
    for i in range(16):
        A(f"    v_mov_b32 v{O+i}, 0")
    A(f"    v_mov_b32 v{T+1}, v{vKADDR}")
    for j in range(4):
        A(f"    v_mov_b32 v{T+2+j}, v{vVA[j]}")
    A(f"    s_mov_b32 s{sCNT}, {NT}")
    A("L_fb_acc:")
    A(f"    ds_read_b128 {r(KF,4)}, v{T+1}")
    for j in range(4):
        A(f"    ds_read_b64_tr_b16 {r(VF[0]+2*j,2)}, v{T+2+j}")
    A(f"    v_add_u32 v{T+1}, 1024, v{T+1}")
    for j in range(4):
        A(f"    v_add_u32 v{T+2+j}, {VSTR}, v{T+2+j}")
    A("    s_waitcnt lgkmcnt(0)")
    A(f"    v_mfma_f32_32x32x16_bf16 {r(s,16)}, {r(KF,4)}, {r(Q,4)}, 0")
    A("    s_nop 15")
    for i in range(16):
        A(f"    v_sub_f32 v{s+i}, v{s+i}, v{T}")
    for i in range(16):
        A(f"    v_exp_f32 v{s+i}, v{s+i}")
    A("    s_nop 0")
    for j in range(8):
        A(f"    v_cvt_pk_bf16_f32 v{PK[j>>2]+(j&3)}, v{s+2*j}, v{s+2*j+1}")
    A("    s_nop 1")
    A(f"    v_mfma_f32_32x32x16_bf16 {r(O,16)}, {r(VF[0],4)}, {r(PK[0],4)}, {r(O,16)}")
    A(f"    v_mfma_f32_32x32x16_bf16 {r(O,16)}, {r(VF[0]+4,4)}, {r(PK[1],4)}, {r(O,16)}")
    A(f"    s_sub_u32 s{sCNT}, s{sCNT}, 1")
    A(f"    s_cmp_lg_u32 s{sCNT}, 0")
    A("    s_cbranch_scc1 L_fb_acc")
    A("    s_branch L_finish")
    A(f""".section .rodata,"a"
.p2align 6
.amdhsa_kernel {NAME}_kernel
  .amdhsa_next_free_vgpr {NVGPR}
  .amdhsa_next_free_sgpr 48
  .amdhsa_accum_offset {NVGPR}
  .amdhsa_group_segment_fixed_size 0
  .amdhsa_kernarg_size 48
  .amdhsa_user_sgpr_count 2
  .amdhsa_user_sgpr_kernarg_segment_ptr 1
  .amdhsa_system_sgpr_workgroup_id_x 1
.end_amdhsa_kernel""")
    open(out, "w").write("\n".join(L) + "\n")

if __name__ == "__main__":
    out = sys.argv[1] if len(sys.argv) > 1 else f"cdna_kernels/{NAME}.s"
    barriers = {4: 10, 12: 0}
    prios = {}
    gen(barriers, prios, out)
```

```python
import sys, re
def add_stamps(text, markers, wg=0, wave=0):
    lines = text.split("\n")
    out = []
    idx = 0
    counts = {}
    for ln in lines:
        out.append(ln)
        for mi, (pat, occ) in enumerate(markers):
            if re.search(pat, ln):
                counts[mi] = counts.get(mi, 0) + 1
                if counts[mi] == occ:
                    out.append(f"    s_memtime s[{50+2*mi}:{51+2*mi}]")
    text = "\n".join(out)
    n = len(markers)
    text = text.replace("    s_load_dwordx4 s[36:39], s[0:1], 0", "    s_memrealtime s[80:81]\n    s_memtime s[84:85]\n    s_load_dwordx2 s[90:91], s[0:1], 32\n    s_load_dwordx4 s[36:39], s[0:1], 0", 1)
    dump = ["    s_waitcnt vmcnt(0)", "    s_memtime s[86:87]", "    s_memrealtime s[82:83]", "    s_waitcnt lgkmcnt(0)",
            f"    s_cmp_lg_u32 s2, {wg}", "    s_cbranch_scc1 L_end", f"    s_cmp_lg_u32 s24, {wave}", "    s_cbranch_scc1 L_end",
            "    s_mov_b32 s92, s90", "    s_mov_b32 s93, s91", "    s_mov_b32 s94, 256", "    s_mov_b32 s95, 0x00020000",
            "    v_mov_b32 v1, 0"]
    for mi in range(n):
        dump.append(f"    s_sub_u32 s44, s{50+2*mi}, s84")
        dump.append(f"    v_mov_b32 v9, s44")
        dump.append(f"    buffer_store_dword v9, v1, s[92:95], 0 offen offset:{4*mi}")
    dump.append(f"    s_sub_u32 s44, s86, s84")
    dump.append(f"    v_mov_b32 v9, s44")
    dump.append(f"    buffer_store_dword v9, v1, s[92:95], 0 offen offset:{4*n}")
    dump.append(f"    s_sub_u32 s44, s82, s80")
    dump.append(f"    v_mov_b32 v9, s44")
    dump.append(f"    buffer_store_dword v9, v1, s[92:95], 0 offen offset:{4*n+4}")
    text = text.replace("L_end:\n", "\n".join(dump) + "\nL_end:\n", 1)
    text = text.replace(".amdhsa_next_free_sgpr 48", ".amdhsa_next_free_sgpr 100")
    return text
if __name__ == "__main__":
    t = open(sys.argv[1]).read()
    wg = int(sys.argv[3]) if len(sys.argv) > 3 else 0
    wave = int(sys.argv[4]) if len(sys.argv) > 4 else 0
    markers = [(r"s_mov_b32 s8, s36", 1), (r"s_waitcnt vmcnt\(17\)", 1), (r"s_waitcnt vmcnt\(16\)", 1), (r"s_barrier", 1),
               (r"---- tile 4 ----", 1), (r"s_barrier", 2), (r"---- tile 12 ----", 1), (r"s_barrier", 3), (r"---- tile 32 ----", 1), (r"L_finish:", 1)]
    open(sys.argv[2], "w").write(add_stamps(t, markers, wg, wave))
```
